```python
import torch

def _softmax(x, axis=-1):
    return torch.softmax(x, dim=axis)

def _gelu(x):
    return torch.nn.functional.gelu(x, approximate='tanh')

def _silu(x):
    return torch.nn.functional.silu(x)

def _sigmoid(x):
    return torch.sigmoid(x)

def _layernorm(x, axis=-1, eps=1e-05):
    m = x.mean(dim=axis, keepdim=True)
    v = x.var(dim=axis, keepdim=True, unbiased=False)
    return (x - m) / torch.sqrt(v + eps)

def _scatter_add(tgt, idx, src, axis=0):
    return tgt.clone().index_add_(axis, idx, src)

def _segment_sum(src, seg, n):
    out = torch.zeros((n,) + src.shape[1:], dtype=src.dtype)
    return out.index_add_(0, seg, src)

def _pad(x, pw):
    flat = tuple((v for pair in reversed(pw) for v in pair))
    return torch.nn.functional.pad(x, flat)
kernel_name = 'gather_scatter__tensor_product_equiv_equiformer__graph'

def setup_inputs():

    _w = lambda a: (lambda t: t.to(torch.bfloat16) if t.is_floating_point() else t)(torch.as_tensor(a))
    N, deg, C, De = (25000, 32, 64, max(0, 1))
    E = N * deg
    src = (lambda lo, hi, *s: torch.randint(lo, hi, s))(0, N, E).to(torch.int64)
    dst = (lambda lo, hi, *s: torch.randint(lo, hi, s))(0, N, E).to(torch.int64)
    rvec = (lambda *s: torch.randn(*s, dtype=torch.bfloat16) * 0.05)(E, 3).to(float)
    rn = (torch.linalg.norm(rvec, dim=-1, keepdim=True) + 1e-06).to(float)
    rhat = (rvec / rn).to(float)
    eps = torch.zeros((3, 3, 3), dtype=float)
    eps[0, 1, 2] = eps[1, 2, 0] = eps[2, 0, 1] = 1.0
    eps[0, 2, 1] = eps[2, 1, 0] = eps[1, 0, 2] = -1.0
    return {'x': _w((lambda *s: torch.randn(*s, dtype=torch.bfloat16) * 0.4)(N, 4 * C).to(float)), 'rhat': _w(rhat), 'e_attr': _w((lambda *s: torch.randn(*s, dtype=torch.bfloat16) * 0.4)(E, De).to(float)), 'src': _w(src), 'dst': _w(dst), 'w_rad': _w((lambda *s: torch.randn(*s, dtype=torch.bfloat16) * 0.4)(De, 5 * C).to(float)), 'w_si0': _w((lambda *s: torch.randn(*s, dtype=torch.bfloat16) * 0.4)(2 * C, C).to(float)), 'w_si1': _w((lambda *s: torch.randn(*s, dtype=torch.bfloat16) * 0.05)(3 * C, C).to(float)), 'cg_eps': _w(eps)}

def reference(x, rhat, e_attr, src, dst, w_rad, w_si0, w_si1, cg_eps):
    N = x.shape[0]
    C = w_si0.shape[1]
    E = rhat.shape[0]
    x0 = x[:, :C].clone()
    x1 = x[:, C:].reshape(N, 3, C)
    R = (e_attr @ w_rad).reshape(E, 5, C)
    f0 = x0[src]
    f1 = x1[src]
    Y1 = rhat
    p00_0 = f0 * R[:, 0, :]
    p11_0 = torch.einsum('ejc,ej->ec', f1, Y1) * R[:, 1, :]
    p01_1 = torch.einsum('ec,ej->ejc', f0, Y1) * R[:, 2, :][:, None, :]
    p10_1 = f1 * R[:, 3, :][:, None, :]
    p11_1 = torch.einsum('ijk,ekc,ej->eic', cg_eps, f1, Y1) * R[:, 4, :][:, None, :]
    m0 = torch.concatenate([p00_0, p11_0], axis=-1) @ w_si0
    m1 = torch.einsum('ejp,pc->ejc', torch.concatenate([p01_1, p10_1, p11_1], axis=-1), w_si1)
    agg0 = _segment_sum(m0, dst, N)
    agg1 = _segment_sum(m1.reshape(E, 3 * C), dst, N).reshape(N, 3, C)
    gate = _sigmoid(agg0)
    out1 = agg1 * gate[:, None, :]
    return torch.concatenate([agg0, out1.reshape(N, 3 * C)], axis=-1)
```

```python
import re


class Asm:
    def __init__(self):
        self.lines = []
        self._u = 0

    def __call__(self, s=''):
        for ln in s.split('\n'):
            ln = ln.strip()
            if ln:
                if ln.endswith(':') or ln.startswith('.') or ln.startswith(';'):
                    self.lines.append(ln)
                else:
                    self.lines.append('    ' + ln)

    def label(self, base):
        self._u += 1
        return f'{base}_{self._u}'

    def text(self):
        return '\n'.join(self.lines) + '\n'


def vr(n, cnt=1):
    return f'v{n}' if cnt == 1 else f'v[{n}:{n + cnt - 1}]'


def ar(n, cnt=1):
    return f'a{n}' if cnt == 1 else f'a[{n}:{n + cnt - 1}]'


def sr(n, cnt=1):
    return f's{n}' if cnt == 1 else f's[{n}:{n + cnt - 1}]'


_REG = re.compile(r'^-?\|?(abs\()?([vas])(\d+|\[(\d+):(\d+)\])\)?\|?$')


def regs_of(op):
    op = op.strip()
    if op in ('vcc', 'vcc_lo', 'vcc_hi'):
        return {('s', 'vcc')}
    if op in ('exec', 'exec_lo', 'exec_hi'):
        return {('s', 'exec')}
    if op == 'm0':
        return {('s', 'm0')}
    m = _REG.match(op)
    if not m:
        return set()
    k = m.group(2)
    if m.group(4) is not None:
        return {(k, i) for i in range(int(m.group(4)), int(m.group(5)) + 1)}
    return {(k, int(m.group(3)))}


TRANS = ('v_exp_f32', 'v_log_f32', 'v_rcp_f32', 'v_rsq_f32', 'v_sqrt_f32', 'v_sin_f32', 'v_cos_f32')


class Ins:
    def __init__(self, text):
        self.text = text.strip()
        t = self.text.split(';')[0].strip()
        parts = t.split(None, 1)
        self.op = parts[0]
        rest = parts[1] if len(parts) > 1 else ''
        ops, depth, cur = [], 0, ''
        for ch in rest:
            if ch in '[(':
                depth += 1
            if ch in '])':
                depth -= 1
            if ch == ',' and depth == 0:
                ops.append(cur)
                cur = ''
            else:
                cur += ch
        if cur.strip():
            ops.append(cur)
        self.mods = ''
        if ops:
            last = ops[-1].strip().split(None, 1)
            ops[-1] = last[0]
            self.mods = last[1] if len(last) > 1 else ''
        self.ops = [o.strip() for o in ops]
        op = self.op
        self.is_valu = op.startswith('v_') and not op.startswith('v_mfma')
        self.is_mfma = op.startswith('v_mfma')
        self.is_salu = op.startswith('s_')
        self.is_ds = op.startswith('ds_')
        self.is_vmem = op.startswith('buffer_') or op.startswith('global_')
        self.is_dpp = '_dpp' in op
        self.is_sdwa = '_sdwa' in op
        self.is_trans = any(op.startswith(x) for x in TRANS)
        self.dst, self.src = set(), set()
        o = self.ops
        R = regs_of
        if self.is_mfma:
            self.dst = R(o[0])
            self.srcA, self.srcB, self.srcC = R(o[1]), R(o[2]), R(o[3])
            self.src = self.srcA | self.srcB | self.srcC
        elif self.is_valu:
            nd = 1
            if op.startswith(('v_add_co', 'v_sub_co', 'v_addc_co', 'v_subb_co', 'v_mad_u64')):
                nd = 2
            for x in o[:nd]:
                self.dst |= R(x)
            for x in o[nd:]:
                self.src |= R(x)
            if op.startswith('v_cmpx'):
                self.dst |= {('s', 'exec')}
            if op.startswith(('v_fmac', 'v_writelane', 'v_dot2c')) or self.is_dpp:
                self.src |= R(o[0])
            if op.startswith('v_permlane'):
                self.dst |= R(o[1])
                self.src |= R(o[0])
        elif self.is_ds:
            if op.startswith(('ds_read', 'ds_bpermute', 'ds_permute', 'ds_swizzle')) or '_rtn' in op:
                self.dst = R(o[0])
                for x in o[1:]:
                    self.src |= R(x)
            else:
                for x in o:
                    self.src |= R(x)
        elif self.is_vmem:
            lds = ' lds' in (' ' + self.mods) or 'load_lds' in op
            ret = ('load' in op and not lds) or ('atomic' in op and 'sc0' in self.mods)
            if ret:
                self.dst = R(o[0])
                for x in o[1:]:
                    self.src |= R(x)
                if 'atomic' in op:
                    self.src |= R(o[0])
            else:
                for x in o:
                    self.src |= R(x)
            if lds:
                self.src |= {('s', 'm0')}
            self.is_ldsdma = lds
            self.wide_store = ('store_dwordx3' in op or 'store_dwordx4' in op)
            if self.wide_store:
                self.store_data = R(o[0]) if op.startswith('buffer') else R(o[1])
        elif self.is_salu:
            if op.startswith(('s_cmp', 's_bitcmp', 's_cbranch', 's_branch', 's_waitcnt', 's_nop', 's_barrier',
                              's_endpgm', 's_setprio', 's_sleep')):
                for x in o:
                    self.src |= R(x)
            else:
                self.dst = R(o[0]) if o else set()
                for x in o[1:]:
                    self.src |= R(x)
                if 'saveexec' in op:
                    self.dst |= {('s', 'exec')}

    def states(self):
        if self.op == 's_nop':
            return int(self.ops[0], 0) + 1
        return 1


def _need(p, c):
    need = 0
    sg = lambda s: {r for r in s if r[0] == 's'}
    vg = lambda s: {r for r in s if r[0] in 'va'}
    if p.is_valu:
        psg = sg(p.dst) - {('s', 'exec')}
        if psg:
            if c.is_vmem and psg & c.src:
                need = max(need, 5)
            if c.op.startswith(('v_readlane', 'v_writelane')) and psg & regs_of(c.ops[-1]):
                need = max(need, 4)
            if c.is_valu and psg & c.src:
                need = max(need, 2)
        if ('s', 'exec') in p.dst:
            if c.is_dpp:
                need = max(need, 5)
            if c.op.startswith(('v_readlane', 'v_readfirstlane', 'v_writelane', 'v_permlane')) or c.is_mfma:
                need = max(need, 4)
            if c.is_valu and ('s', 'exec') in c.src:
                need = max(need, 2)
        pv = vg(p.dst)
        if pv:
            if c.is_dpp and len(c.ops) > 1 and pv & (regs_of(c.ops[1]) | regs_of(c.ops[0])):
                need = max(need, 2)
            if c.op.startswith(('v_readlane', 'v_readfirstlane')) and pv & c.src:
                need = max(need, 1)
            if c.op.startswith('v_permlane') and pv & c.src:
                need = max(need, 2)
            if c.is_mfma and pv & c.src:
                need = max(need, 2)
            if p.is_trans and c.is_valu and not c.is_trans and pv & c.src:
                need = max(need, 1)
            if (p.is_sdwa and 'dst_sel:DWORD' not in p.mods and not p.op.startswith('v_cmp')) or \
                    ('op_sel' in p.mods and re.search(r'op_sel:\[\d,\d,\d,1\]', p.mods)):
                if c.is_valu and pv & (c.src | c.dst):
                    need = max(need, 1)
    if p.is_salu and ('s', 'm0') in p.dst:
        if c.is_vmem and getattr(c, 'is_ldsdma', False):
            need = max(need, 1)
    if p.is_vmem and getattr(p, 'wide_store', False):
        if p.store_data & c.dst:
            need = max(need, 2 if c.is_valu or c.is_mfma else 1)
    if p.is_mfma:
        passes = 8 if '32x32' in p.op else (2 if '4x4' in p.op else 4)
        tb_ab = {2: 5, 4: 8, 8: 12}[passes]
        tb_cpart = {2: 4, 4: 6, 8: 10}[passes]
        tb_war = {2: 1, 4: 3, 8: 7}[passes]
        if c.is_mfma:
            if p.dst & (c.srcA | c.srcB):
                need = max(need, tb_ab)
            if p.dst & c.srcC:
                if p.dst == c.srcC and p.op == c.op:
                    need = max(need, 2 if passes == 2 else 0)
                else:
                    need = max(need, tb_cpart)
            elif p.dst & c.dst:
                need = max(need, tb_cpart)
        else:
            if p.dst & (c.src | c.dst):
                need = max(need, tb_ab)
            if c.is_valu and p.srcC & c.dst:
                need = max(need, tb_war)
    return need


def check_hazards(text, window=14):
    items, labels = [], {}
    for ln in text.split('\n'):
        s = ln.split(';')[0].strip()
        if not s or s.startswith('.') or s.startswith('//'):
            continue
        if s.endswith(':'):
            labels[s[:-1]] = len(items)
            continue
        items.append(Ins(s))
    problems = []

    def succ(i):
        ins = items[i]
        if ins.op == 's_endpgm':
            return []
        if ins.op == 's_branch':
            return [labels[ins.ops[0]]]
        out = [i + 1] if i + 1 < len(items) else []
        if ins.op.startswith('s_cbranch'):
            out.append(labels[ins.ops[0]])
        return out

    for i, p in enumerate(items):
        if not (p.is_valu or p.is_mfma or (p.is_salu and ('s', 'm0') in p.dst) or
                (p.is_vmem and getattr(p, 'wide_store', False))):
            continue
        seen = {}
        stack = [(j, 0) for j in succ(i)]
        while stack:
            j, d = stack.pop()
            if d > window or seen.get(j, 99) <= d:
                continue
            seen[j] = d
            c = items[j]
            n = _need(p, c)
            if n > d:
                problems.append(f'need {n} have {d}: [{p.text}] -> [{c.text}]')
            for k in succ(j):
                stack.append((k, d + c.states()))
    return problems
```

```python
import sys
import os
sys.path.insert(0, os.path.dirname(os.path.abspath(__file__)))
from asmlib import Asm, vr, ar, sr, check_hazards

KNAME = 'gather_scatter__tensor_product_equiv_equiformer__graph_kernel'

N_NODES = 25000
N_EDGES = 800000
NPROD = 250
EPP = 3200
NPB = 98
T_OFF = 0
W_OFF = 0x40000
REC_OFF = 0x80000
RECB = EPP * 12

DEFAULT = dict(dbg=None, R=4, stamps=False, k1_store='', xpf=False, out_store='')


def gen_k1(A, cfg):
    CNT, BASE = RECB, RECB + 1024
    st = cfg['k1_store']
    A(f'''
.text
.globl bin_kernel
.p2align 8
.type bin_kernel,@function
bin_kernel:
s_cmp_ge_u32 s2, {NPROD}
s_cbranch_scc1 K1_special
s_load_dwordx4 s[4:7], s[0:1], 8
s_load_dwordx4 s[8:11], s[0:1], 24
s_load_dwordx2 s[12:13], s[0:1], 88
s_load_dwordx2 s[28:29], s[0:1], 0
v_lshrrev_b32 v40, 6, v0
v_lshlrev_b32 v41, 2, v0
v_readfirstlane_b32 s14, v40
v_mov_b32 v42, 0
s_mul_i32 s15, s2, {EPP * 4}
s_mul_i32 s16, s2, {EPP * 2}
s_mul_i32 s17, s2, {EPP * 6}
v_lshl_add_u32 v1, v0, 4, s15
v_lshl_add_u32 v2, v0, 3, s16
v_mul_u32_u24 v3, 24, v0
v_add_u32 v3, s17, v3
s_cmp_ge_u32 s14, 4
s_cbranch_scc1 K1_nozero
ds_write_b32 v41, v42 offset:{CNT}
K1_nozero:
s_cmp_eq_u32 s14, 12
s_cselect_b32 exec_hi, 0, -1
s_waitcnt lgkmcnt(0)
global_load_dwordx4 v[4:7], v1, s[10:11]
global_load_dwordx4 v[8:11], v1, s[8:9]
global_load_dwordx2 v[12:13], v2, s[6:7]
global_load_dwordx4 v[14:17], v3, s[4:5]
global_load_dwordx2 v[18:19], v3, s[4:5] offset:16
s_barrier
s_mov_b32 s18, 42800
s_mov_b32 s19, -{NPB}
s_mov_b32 s20, -288
v_mov_b32 v43, 1
s_waitcnt vmcnt(4)
''')
    for i in range(4):
        A(f'''
v_mul_u32_u24 v48, s18, v{4 + i}
v_lshrrev_b32 v48, 22, v48
v_mad_i32_i24 v{44 + i}, v48, s19, v{4 + i}
v_lshlrev_b32 v{20 + i}, 2, v48
ds_add_rtn_u32 v{24 + i}, v{20 + i}, v43 offset:{CNT}
''')
    A('s_waitcnt vmcnt(3)')
    for i in range(4):
        u, k, src = 44 + i, 28 + i, 8 + i
        A(f'''
v_lshl_add_u32 v48, v{u}, 2, s20
v_max_i32 v{u}, v{u}, v48
v_and_or_b32 v{k}, v{u}, 3, 4
v_and_b32 v48, 0xfc, v{u}
v_lshl_or_b32 v{k}, v48, 9, v{k}
v_mul_u32_u24 v48, 20, v{src}
v_lshrrev_b32 v48, 16, v48
v_lshl_or_b32 v{k}, v48, 8, v{k}
v_lshl_or_b32 v{k}, v{src}, 16, v{k}
''')
    A('s_waitcnt vmcnt(0)')

    def unpack(dst, reg, half):
        if half == 0:
            A(f'v_lshlrev_b32 v{dst}, 16, v{reg}')
        else:
            A(f'v_and_b32 v{dst}, 0xffff0000, v{reg}')
    for i in range(4):
        unpack(48, 12 + (i >> 1), i & 1)
        for j in range(3):
            n = 3 * i + j
            unpack(49 + j, 14 + (n >> 1), n & 1)
        for j in range(3):
            A(f'v_mul_f32 v{49 + j}, v48, v{49 + j}')
        A(f'v_cvt_pk_bf16_f32 v{32 + 2 * i}, v48, v49')
        A(f'v_cvt_pk_bf16_f32 v{33 + 2 * i}, v50, v51')
    if cfg['xpf']:
        A(f'''
s_mul_i32 s15, s2, 51200
v_lshl_add_u32 v52, v0, 6, s15
global_load_dword v53, v52, s[28:29]
''')
    A('s_waitcnt lgkmcnt(0)')
    for i in range(4):
        A(f'v_mul_u32_u24 v{24 + i}, 12, v{24 + i}')
    A(f'''
s_barrier
s_mov_b64 exec, -1
v_and_b32 v48, 63, v0
v_lshlrev_b32 v48, 4, v48
ds_read_b128 v[56:59], v48 offset:{CNT}
s_waitcnt lgkmcnt(0)
v_add_u32 v60, v56, v57
v_add_u32 v61, v60, v58
v_add_u32 v62, v61, v59
v_mov_b32 v63, v62
s_nop 1
v_add_u32_dpp v63, v63, v63 row_shr:1 row_mask:0xf bank_mask:0xf bound_ctrl:0
s_nop 1
v_add_u32_dpp v63, v63, v63 row_shr:2 row_mask:0xf bank_mask:0xf bound_ctrl:0
s_nop 1
v_add_u32_dpp v63, v63, v63 row_shr:4 row_mask:0xf bank_mask:0xf bound_ctrl:0
s_nop 1
v_add_u32_dpp v63, v63, v63 row_shr:8 row_mask:0xf bank_mask:0xf bound_ctrl:0
s_nop 1
v_add_u32_dpp v63, v63, v63 row_bcast:15 row_mask:0xa bank_mask:0xf
s_nop 1
v_add_u32_dpp v63, v63, v63 row_bcast:31 row_mask:0xc bank_mask:0xf
v_sub_u32 v63, v63, v62
v_add_u32 v65, v63, v56
v_add_u32 v66, v63, v60
v_add_u32 v67, v63, v61
v_mul_u32_u24 v64, 12, v63
v_mul_u32_u24 v65, 12, v65
v_mul_u32_u24 v66, 12, v66
v_mul_u32_u24 v67, 12, v67
ds_write_b128 v48, v[64:67] offset:{BASE}
s_cmp_eq_u32 s14, 12
s_cselect_b32 exec_hi, 0, -1
''')
    for i in range(4):
        A(f'ds_read_b32 v{44 + i}, v{20 + i} offset:{BASE}')
    A(f'''
s_cmp_ge_u32 s14, 4
s_cbranch_scc1 K1_noT
ds_read_b32 v50, v41 offset:{BASE}
ds_read_b32 v51, v41 offset:{CNT}
s_lshl_b32 s15, s2, 2
v_lshl_add_u32 v52, v0, 10, s15
s_waitcnt lgkmcnt(0)
v_lshl_or_b32 v50, v51, 16, v50
global_store_dword v52, v50, s[12:13] offset:{T_OFF}{st}
K1_noT:
s_waitcnt lgkmcnt(0)
''')
    for i in range(4):
        A(f'''
v_add_u32 v{44 + i}, v{44 + i}, v{24 + i}
ds_write2_b32 v{44 + i}, v{32 + 2 * i}, v{33 + 2 * i} offset0:0 offset1:1
ds_write_b32 v{44 + i}, v{28 + i} offset:8
''')
    A(f'''
s_mul_i32 s15, s2, {RECB}
s_add_u32 s15, s15, {REC_OFF}
s_add_u32 s22, s12, s15
s_addc_u32 s23, s13, 0
s_add_u32 s24, s22, 12800
s_addc_u32 s25, s23, 0
s_add_u32 s26, s22, 25600
s_addc_u32 s27, s23, 0
v_lshlrev_b32 v48, 4, v0
s_waitcnt lgkmcnt(0)
s_barrier
ds_read_b128 v[4:7], v48
ds_read_b128 v[8:11], v48 offset:12800
ds_read_b128 v[12:15], v48 offset:25600
s_waitcnt lgkmcnt(2)
global_store_dwordx4 v48, v[4:7], s[22:23]{st}
s_waitcnt lgkmcnt(1)
global_store_dwordx4 v48, v[8:11], s[24:25]{st}
s_waitcnt lgkmcnt(0)
global_store_dwordx4 v48, v[12:15], s[26:27]{st}
s_endpgm
''')
    A(f'''
K1_special:
s_cmp_ge_u32 s2, 255
s_cbranch_scc1 K1_end
s_load_dwordx4 s[4:7], s[0:1], 40
s_load_dwordx2 s[8:9], s[0:1], 56
s_load_dwordx2 s[12:13], s[0:1], 88
v_lshrrev_b32 v40, 6, v0
v_and_b32 v1, 63, v0
v_readfirstlane_b32 s14, v40
s_cmp_eq_u32 s2, 254
s_cbranch_scc0 K1_wprep
s_cmp_ge_u32 s14, 4
s_cbranch_scc1 K1_end
v_lshlrev_b32 v2, 10, v0
v_mov_b32 v4, 0
v_mov_b32 v5, 0
s_waitcnt lgkmcnt(0)
global_store_dwordx2 v2, v[4:5], s[12:13] offset:{T_OFF + 4 * NPROD}
global_store_dwordx2 v2, v[4:5], s[12:13] offset:{T_OFF + 4 * NPROD + 8}
global_store_dwordx2 v2, v[4:5], s[12:13] offset:{T_OFF + 4 * NPROD + 16}
s_endpgm
K1_wprep:
s_sub_u32 s15, s2, {NPROD}
s_mul_i32 s15, s15, 13
s_add_u32 s15, s15, s14
s_cmp_ge_u32 s15, 40
s_cbranch_scc1 K1_end
s_lshr_b32 s16, s15, 3          ; blk
s_bfe_u32 s17, s15, 0x10002     ; s
s_and_b32 s18, s15, 3           ; ob
s_waitcnt lgkmcnt(0)
s_cmp_lt_u32 s16, 2
s_cselect_b32 s10, s6, s8
s_cselect_b32 s11, s7, s9
s_cselect_b32 s19, 0, 2
s_sub_u32 s19, s16, s19
s_lshl_b32 s19, s19, 13
v_lshrrev_b32 v2, 4, v1         ; kg
v_and_b32 v3, 15, v1            ; mo
s_lshl_b32 s20, s17, 3
v_lshl_add_u32 v4, v2, 1, s20
s_lshr_b32 s21, s18, 1
s_lshl_b32 s21, s21, 5
s_and_b32 s22, s18, 1
s_lshl_b32 s22, s22, 2
s_add_u32 s21, s21, s22
v_lshrrev_b32 v5, 2, v3
v_and_b32 v6, 3, v3
v_lshl_add_u32 v5, v5, 3, v6
v_add_u32 v5, s21, v5           ; o
v_lshlrev_b32 v6, 7, v4
v_lshl_add_u32 v6, v5, 1, v6
v_add_u32 v6, s19, v6
v_add_u32 v7, 0x1000, v6
s_lshl_b32 s23, s16, 7
v_lshl_add_u32 v8, v4, 1, s23
''')
    for i in range(8):
        off = (i & 3) * 2048 + (i >> 2) * 128
        base = 6 if off < 4096 else 7
        A(f'global_load_ushort v{16 + i}, v{base}, s[10:11] offset:{off & 4095}')
        A(f'global_load_ushort v{24 + i}, v8, s[4:5] offset:{(i & 3) * 32 + (i >> 2) * 2}')
    A('s_waitcnt vmcnt(0)')
    for i in range(8):
        A(f'v_lshlrev_b32 v{16 + i}, 16, v{16 + i}')
        A(f'v_lshlrev_b32 v{24 + i}, 16, v{24 + i}')
        A(f'v_mul_f32 v{16 + i}, v{16 + i}, v{24 + i}')
    for i in range(4):
        A(f'v_cvt_pk_bf16_f32 v{32 + i}, v{16 + 2 * i}, v{17 + 2 * i}')
    A(f'''
s_lshl_b32 s15, s15, 10
s_add_u32 s15, s15, {W_OFF}
v_lshl_add_u32 v2, v1, 4, s15
global_store_dwordx4 v2, v[32:35], s[12:13]
K1_end:
s_endpgm
''')


def k1_descriptor(A):
    A('''
.amdhsa_kernel bin_kernel
.amdhsa_next_free_vgpr 72
.amdhsa_next_free_sgpr 40
.amdhsa_accum_offset 72
.amdhsa_group_segment_fixed_size 0
.amdhsa_kernarg_size 96
.amdhsa_user_sgpr_count 2
.amdhsa_user_sgpr_kernarg_segment_ptr 1
.amdhsa_system_sgpr_workgroup_id_x 1
.amdhsa_float_denorm_mode_32 3
.end_amdhsa_kernel
''')


NG = 7
SMAX = 6
GCAP = SMAX * 32


def gen_k2(A, cfg):
    R = cfg['R']
    STAGE_W = R * 4096
    ENT = 4 * STAGE_W
    ENT_W = NG * GCAP * 4
    COEF = ENT + 4 * ENT_W
    PBUF = COEF + 8 * ENT_W
    ZERO = PBUF + 32768
    FLAG = ZERO + 32
    LDS = FLAG + 32
    assert LDS <= 163840, LDS
    CNT, BASE = 0, 1024
    cfg['lds2'] = LDS

    vPiece, vLaneD, vLaneA, vLaneC, vZero, vQ, vList = 1, 2, 3, 4, 5, 6, 7
    vBc = 8
    vPw, vPr = 12, 13
    vLane = 15
    U0 = 16
    B = 80
    AF = 96
    ED = 100
    EA = 104
    vCand, vT0, vT1 = 106, 107, 108
    vBt = 109
    vX = 113
    CV = 114
    PF = 120
    ACC = 144
    acc = lambda g, cb: ACC + 16 * g + 4 * cb
    TT = 112
    REC = 128
    pI0, pI1, pR0, pR1, pOOB, pOne, pKey = 80, 81, 82, 83, 84, 85, 86
    pa = 88
    W = lambda blk, s, ob: (blk * 8 + s * 4 + ob) * 4
    U1 = 160

    def Ureg(t, r, ob):
        return vr(U0 + 16 * r + 4 * ob, 4) if t == 0 else ar(U1 + 16 * r + 4 * ob, 4)

    sX, sRec, sOut = 4, 8, 12
    sWs = 16
    sWave, sStage, sSlot, s512 = 18, 19, 20, 21
    sF = 22
    sIF, sIA, sN, sStep, sMax, sFr = 26, 27, 28, 29, 30, 31
    sNch = 32
    sRb, sLo, sWin, sAct, sT, sO1, sO2 = 39, 40, 41, 42, 43, 44, 45
    sM2 = 46
    sFlag, sMore, sEnt, sCoef, sRound, sT2 = 48, 49, 50, 51, 52, 53
    sWp = 54
    sTp = 56
    sM3 = 58
    sDbg = 60
    sStamp = 64

    stamps = cfg['stamps']
    nst = [0]

    def stamp():
        if stamps:
            A(f's_memrealtime s[{sStamp + 2 * nst[0]}:{sStamp + 2 * nst[0] + 1}]')
            nst[0] += 1

    def dump(tag, regs):
        if cfg['dbg'] != tag:
            return
        A('s_waitcnt vmcnt(0) lgkmcnt(0)')
        A('s_mov_b64 exec, -1')
        A(f's_add_u32 s{sM3}, s{sWs}, 0x2000000')
        A(f's_addc_u32 s{sM3 + 1}, s{sWs + 1}, 0')
        A(f's_lshl_b32 s{sT}, s2, 10')
        A(f'v_lshl_add_u32 v0, v0, 2, s{sT}')
        for rg in regs:
            if isinstance(rg, str):
                A(f'v_mov_b32 v1, {rg}')
                A(f'global_store_dword v0, v1, s[{sM3}:{sM3 + 1}]')
            else:
                A(f'global_store_dword v0, v{rg}, s[{sM3}:{sM3 + 1}]')
            A(f'v_add_u32 v0, 0x40000, v0')
        A('s_waitcnt vmcnt(0)')
        A('s_endpgm')

    A(f'''
.text
.globl {KNAME}
.p2align 8
.type {KNAME},@function
{KNAME}:
s_cmp_ge_u32 s2, 256
s_cbranch_scc1 K2_end
''')
    stamp()
    A(f'''
s_load_dwordx2 s[{sX}:{sX + 1}], s[0:1], 0
s_load_dwordx2 s[{sOut}:{sOut + 1}], s[0:1], 72
s_load_dwordx2 s[{sWs}:{sWs + 1}], s[0:1], 88
s_load_dwordx2 s[{sDbg}:{sDbg + 1}], s[0:1], 80
v_lshrrev_b32 v{pa}, 6, v0
v_and_b32 v{vLane}, 63, v0
v_readfirstlane_b32 s{sWave}, v{pa}
s_movk_i32 s{s512}, 512
s_mov_b32 s{sEnt}, {ENT}
s_mov_b32 s{sCoef}, {COEF}
s_mov_b32 s{sRb}, 0
s_mov_b32 s{sLo}, 0
s_movk_i32 s{sWin}, 256
s_mov_b32 s{sMore}, 0
s_mul_i32 s{sStage}, s{sWave}, {STAGE_W}
s_waitcnt lgkmcnt(0)
s_sub_u32 s{sX}, s{sX}, 3072
s_subb_u32 s{sX + 1}, s{sX + 1}, 0
s_mov_b32 s{sX + 2}, {N_NODES * 512 + 3072}
s_mov_b32 s{sX + 3}, 0x20000
s_add_u32 s{sRec}, s{sWs}, {REC_OFF}
s_addc_u32 s{sRec + 1}, s{sWs + 1}, 0
s_mov_b32 s{sRec + 2}, {NPROD * RECB}
s_mov_b32 s{sRec + 3}, 0x20000
s_mov_b32 s{sOut + 2}, {N_NODES * 512}
s_mov_b32 s{sOut + 3}, 0x20000
s_add_u32 s{sWp}, s{sWs}, {W_OFF}
s_addc_u32 s{sWp + 1}, s{sWs + 1}, 0
s_lshl_b32 s{sT}, s2, 10
s_add_u32 s{sT}, s{sT}, {T_OFF}
s_add_u32 s{sTp}, s{sWs}, s{sT}
s_addc_u32 s{sTp + 1}, s{sWs + 1}, 0
''')

    def pass_head():
        A(f'''
K2_pass:
v_lshrrev_b32 v{pa}, 4, v{vLane}
s_lshl_b32 s{sT}, s{sWave}, 8
v_lshl_add_u32 v{pa + 1}, v{pa}, 6, s{sT}
global_load_dwordx4 {vr(TT, 4)}, v{pa + 1}, s[{sTp}:{sTp + 1}]
global_load_dwordx4 {vr(TT + 4, 4)}, v{pa + 1}, s[{sTp}:{sTp + 1}] offset:16
global_load_dwordx4 {vr(TT + 8, 4)}, v{pa + 1}, s[{sTp}:{sTp + 1}] offset:32
global_load_dwordx4 {vr(TT + 12, 4)}, v{pa + 1}, s[{sTp}:{sTp + 1}] offset:48
v_mov_b32 v{pa + 4}, 0
v_mov_b32 v{pa + 5}, 0
v_mov_b32 v{pa + 6}, 0
v_mov_b32 v{pa + 7}, 0
v_lshlrev_b32 v{pa + 2}, 2, v0
ds_write_b32 v{pa + 2}, v{pa + 4} offset:{CNT}
v_lshlrev_b32 v{pa + 2}, 4, v{vLane}
v_and_b32 v{pa + 3}, 48, v{pa + 2}
v_add_u32 v{pa + 3}, {ZERO}, v{pa + 3}
ds_write_b128 v{pa + 3}, {vr(pa + 4, 4)}
s_mul_i32 s{sT}, s{sWave}, {ENT_W}
s_add_u32 s{sT}, s{sT}, {ENT}
v_add_u32 v{pa + 2}, s{sT}, v{pa + 2}
v_mov_b32 v{pa + 8}, 0xffff0000
v_mov_b32 v{pa + 9}, 0xffff0000
v_mov_b32 v{pa + 10}, 0xffff0000
v_mov_b32 v{pa + 11}, 0xffff0000
''')
        offs = list(range(0, ENT_W - 1023, 1024))
        if offs[-1] + 1024 < ENT_W:
            offs.append(ENT_W - 1024)
        for o in offs:
            A(f'ds_write_b128 v{pa + 2}, {vr(pa + 8, 4)} offset:{o}')

    L = vLane
    t0, t1, t2, t3 = pa, pa + 1, pa + 2, pa + 3
    A(f'''
v_bfe_u32 v{t0}, v{L}, 1, 2
v_lshrrev_b32 v{t1}, 4, v{L}
v_xor_b32 v{t0}, v{t0}, v{t1}
v_and_b32 v{t2}, 1, v{L}
v_lshl_or_b32 v{t0}, v{t0}, 1, v{t2}
v_lshlrev_b32 v{vPiece}, 4, v{t0}
v_lshrrev_b32 v{t0}, 3, v{L}
v_lshl_add_u32 v{vLaneD}, v{t0}, 4, s{sEnt}
; a = (l>>2)&7, Gh = l>>5, q = l&3
v_bfe_u32 v{t0}, v{L}, 2, 3
v_lshrrev_b32 v{t1}, 5, v{L}
v_lshl_add_u32 v{t2}, v{t0}, 2, v{t1}
v_lshl_add_u32 v{vLaneA}, v{t2}, 2, s{sEnt}
v_lshl_add_u32 v{vLaneC}, v{t2}, 3, s{sCoef}
v_mov_b32 v{vZero}, {ZERO}
v_and_or_b32 v{vQ}, v{L}, 3, 4
v_and_b32 v{t2}, 3, v{L}
v_lshlrev_b32 v{t2}, 3, v{t2}
v_lshl_add_u32 v{t2}, v{t0}, 7, v{t2}
v_lshl_add_u32 v{t2}, v{t1}, 10, v{t2}
v_add_u32 v{t2}, s{sStage}, v{t2}
v_lshrrev_b32 v{t0}, 1, v{t0}
''')
    for cb in range(4):
        A(f'v_xor_b32 v{t1}, {cb}, v{t0}')
        A(f'v_lshl_add_u32 v{vBc + cb}, v{t1}, 5, v{t2}')
    A(f'''
s_lshl_b32 s{sT}, s{sWave}, 13
s_add_u32 s{sT}, s{sT}, {PBUF}
v_lshrrev_b32 v{t0}, 4, v{L}
v_bfe_u32 v{t1}, v{L}, 1, 3
v_lshrrev_b32 v{t2}, 5, v{L}
v_xor_b32 v{t1}, v{t1}, v{t2}
v_lshlrev_b32 v{t1}, 4, v{t1}
v_lshl_add_u32 v{t1}, v{t0}, 7, v{t1}
v_and_b32 v{t2}, 1, v{L}
v_lshl_add_u32 v{t1}, v{t2}, 3, v{t1}
v_add_u32 v{vPw}, s{sT}, v{t1}
v_bfe_u32 v{t1}, v{L}, 1, 3
v_xor_b32 v{t1}, v{t1}, v{t0}
v_lshlrev_b32 v{t1}, 4, v{t1}
v_and_b32 v{t2}, 15, v{L}
v_lshl_add_u32 v{t1}, v{t2}, 7, v{t1}
v_add_u32 v{vPr}, s{sT}, v{t1}
v_xor_b32 v{vPr + 1}, 64, v{vPr}
''')
    for i in range(64):
        A(f'v_mov_b32 v{U0 + i}, 0')
    for i in range(64):
        A(f'v_accvgpr_write_b32 a{U1 + i}, 0')

    pass_head()
    A(f'''
v_and_b32 v{t0}, 15, v{L}
v_add_u32 v{pI0}, s{sRb}, v{t0}
v_add_u32 v{pI1}, 16, v{pI0}
v_lshrrev_b32 v{t1}, 4, v{L}
s_lshl_b32 s{sT}, s{sWave}, 2
v_add_u32 v{t1}, s{sT}, v{t1}
v_lshlrev_b32 v{t1}, 4, v{t1}
s_mov_b32 s{sT}, {RECB}
v_mul_lo_u32 v{t2}, v{t1}, s{sT}
v_mad_u32_u24 v{pR0}, v{pI0}, 12, v{t2}
v_add_u32 v{pR1}, 192, v{pR0}
v_mov_b32 v{pOOB}, 0x80000000
v_mov_b32 v{pOne}, 1
v_lshrrev_b32 v{t2}, 3, v{L}
v_and_b32 v{t3}, 7, v{L}
v_lshl_add_u32 v{t2}, v{t2}, 5, v{t3}
s_lshl_b32 s{sT}, s{sWave}, 3
v_add_u32 v{t2}, s{sT}, v{t2}
v_lshlrev_b32 v{pKey}, 2, v{t2}
s_waitcnt lgkmcnt(0)
s_barrier
s_waitcnt vmcnt(0)
''')
    stamp()
    A(f'''
s_cmp_eq_u32 s{sWin}, 256
s_cbranch_scc1 K2_nowin
v_subrev_u32 v{t1}, s{sLo}, v{t1}
''')
    for it in range(16):
        A(f'''
v_add_u32 v{t2}, {it}, v{t1}
v_cmp_gt_u32 vcc, s{sWin}, v{t2}
s_nop 1
v_cndmask_b32 v{TT + it}, 0, v{TT + it}, vcc
''')
    A('K2_nowin:')
    A(f's_mov_b32 s{sT}, 0')
    for it in range(16):
        if it % 2 == 0:
            A(f'''
v_cmp_lt_u32_sdwa vcc, v{pI0}, v{TT + it} src0_sel:DWORD src1_sel:WORD_1
v_cmp_lt_u32_sdwa s[{sM2}:{sM2 + 1}], v{pI0}, v{TT + it + 1} src0_sel:DWORD src1_sel:WORD_1
v_add_u32_sdwa v{t2}, v{pR0}, v{TT + it} dst_sel:DWORD dst_unused:UNUSED_PAD src0_sel:DWORD src1_sel:WORD_0
v_add_u32_sdwa v{t3}, v{pR0}, v{TT + it + 1} dst_sel:DWORD dst_unused:UNUSED_PAD src0_sel:DWORD src1_sel:WORD_0
v_cndmask_b32 v{t2}, v{pOOB}, v{t2}, vcc
v_cndmask_b32 v{t3}, v{pOOB}, v{t3}, s[{sM2}:{sM2 + 1}]
s_add_u32 s{sT2}, s{sT}, {RECB}
buffer_load_dwordx3 {vr(REC + 4 * it, 3)}, v{t2}, s[{sRec}:{sRec + 3}], s{sT} offen
buffer_load_dwordx3 {vr(REC + 4 * it + 4, 3)}, v{t3}, s[{sRec}:{sRec + 3}], s{sT2} offen
s_add_u32 s{sT}, s{sT}, {2 * RECB}
''')
    A(f's_mov_b32 s{sAct}, 0')
    for it in range(16):
        lab = A.label('K2_s1')
        A(f'''
v_cmp_lt_u32_sdwa vcc, v{pI1}, v{TT + it} src0_sel:DWORD src1_sel:WORD_1
s_cbranch_vccz {lab}
v_add_u32_sdwa v{t2}, v{pR1}, v{TT + it} dst_sel:DWORD dst_unused:UNUSED_PAD src0_sel:DWORD src1_sel:WORD_0
s_mov_b32 s{sT}, {it * RECB}
v_cndmask_b32 v{t2}, v{pOOB}, v{t2}, vcc
s_bitset1_b32 s{sAct}, {it}
buffer_load_dwordx3 {vr(REC + 64 + 4 * it, 3)}, v{t2}, s[{sRec}:{sRec + 3}], s{sT} offen
{lab}:
''')
    A(f'v_max3_u32 v{t2}, v{TT}, v{TT + 1}, v{TT + 2}')
    for it in range(3, 15, 2):
        A(f'v_max3_u32 v{t2}, v{t2}, v{TT + it}, v{TT + it + 1}')
    A(f'''
v_max_u32 v{t2}, v{t2}, v{TT + 15}
s_add_u32 s{sT}, s{sRb}, 32
v_cmp_lt_u32_sdwa vcc, s{sT}, v{t2} src0_sel:DWORD src1_sel:WORD_1
s_mov_b32 s{sFlag}, 0
s_cbranch_vccz K2_nomore
s_mov_b32 s{sFlag}, 2
K2_nomore:
v_lshlrev_b32 v{t3}, 4, v{L}
s_waitcnt vmcnt(0)
''')
    stamp()
    for f in range(40):
        if f % 4 == 0 and f:
            A(f'v_add_u32 v{t3}, 0x1000, v{t3}')
        A(f'global_load_dwordx4 {ar(4 * f, 4)}, v{t3}, s[{sWp}:{sWp + 1}] offset:{(f % 4) * 1024}')

    def for_sets(fn):
        for st_ in range(32):
            if st_ < 16:
                fn(st_)
            else:
                lab = A.label('K2_set')
                A(f's_bitcmp1_b32 s{sAct}, {st_ - 16}')
                A(f's_cbranch_scc0 {lab}')
                fn(st_)
                A(f'{lab}:')

    def passA(st_):
        r = REC + 4 * st_
        A(f'''
v_cmpx_ne_u32 vcc, 0, v{r + 2}
v_lshlrev_b32_sdwa v{t2}, 2, v{r + 2} dst_sel:DWORD dst_unused:UNUSED_PAD src0_sel:DWORD src1_sel:BYTE_1
ds_add_rtn_u32 v{r + 3}, v{t2}, v{pOne} offset:{CNT}
s_mov_b64 exec, -1
''')
    for_sets(passA)
    A(f'''
s_waitcnt lgkmcnt(0)
s_barrier
ds_read_b32 v{t0}, v{pKey} offset:{CNT}
; slot list constants: si = i/7, gi = i%7
v_mul_u32_u24 v{pa + 4}, 37, v{L}
v_lshrrev_b32 v{pa + 4}, 8, v{pa + 4}
v_mad_i32_i24 v{pa + 5}, v{pa + 4}, -7, v{L}
s_mul_i32 s{sT}, s{sWave}, {NG}
v_add_u32 v{pa + 6}, s{sT}, v{pa + 5}
s_movk_i32 s{sT2}, {GCAP}
v_mul_lo_u32 v{pa + 6}, v{pa + 6}, s{sT2}
v_lshl_add_u32 v{pa + 6}, v{pa + 4}, 5, v{pa + 6}
v_lshlrev_b32 v{pa + 6}, 2, v{pa + 6}
v_lshlrev_b32 v{pa + 5}, 5, v{pa + 5}
v_add_u32 v{pa + 5}, 28, v{pa + 5}
v_lshrrev_b32 v{pa + 7}, 3, v{L}
v_add_u32 v{pa + 7}, s{sT}, v{pa + 7}
v_mul_lo_u32 v{pa + 7}, v{pa + 7}, s{sT2}
s_waitcnt lgkmcnt(0)
v_mov_b32 v{t1}, v{t0}
s_nop 1
v_add_u32_dpp v{t1}, v{t1}, v{t1} row_shr:1 row_mask:0xf bank_mask:0xf bound_ctrl:0
s_nop 1
v_add_u32_dpp v{t1}, v{t1}, v{t1} row_shr:2 row_mask:0xf bank_mask:0xf bound_ctrl:0
s_nop 1
v_add_u32_dpp v{t1}, v{t1}, v{t1} row_shr:4 row_mask:0xf bank_mask:0xf bound_ctrl:0
s_nop 1
v_add_u32_dpp v{t1}, v{t1}, v{t1} row_shr:8 row_mask:0xf bank_mask:0xf bound_ctrl:0
v_mov_b32 v{t2}, 0
s_nop 1
v_mov_b32_dpp v{t2}, v{t1} row_newbcast:7 row_mask:0xf bank_mask:0xc
v_sub_u32 v{t1}, v{t1}, v{t2}
''')
    dump('scan', [t0, t1, pKey, REC + 2, REC + 3, REC + 6, TT, pI0, pR0])
    A(f'''
v_sub_u32 v{t2}, v{t1}, v{t0}
v_add_u32 v{t2}, v{t2}, v{pa + 7}
ds_write_b32 v{pKey}, v{t2} offset:{BASE}
v_cmp_lt_u32 vcc, {GCAP}, v{t1}
v_add_u32 v{t1}, 31, v{t1}
v_lshrrev_b32 v{t1}, 5, v{t1}
ds_bpermute_b32 v{t2}, v{pa + 5}, v{t1}
s_cbranch_vccz K2_noovf
s_or_b32 s{sFlag}, s{sFlag}, 1
K2_noovf:
''')
    for g in range(NG):
        A(f'v_readlane_b32 s{sNch + g}, v{t1}, {8 * g + 7}')
    A(f'''
s_cmp_eq_u32 s{sFlag}, 0
s_cbranch_scc1 K2_noflag
v_mov_b32 v{t3}, {FLAG}
v_mov_b32 v{t0}, s{sFlag}
s_mov_b64 exec, 1
ds_or_b32 v{t3}, v{t0}
s_mov_b64 exec, -1
K2_noflag:
s_max_u32 s{sMax}, s{sNch}, s{sNch + 1}
s_max_u32 s{sMax}, s{sMax}, s{sNch + 2}
s_max_u32 s{sMax}, s{sMax}, s{sNch + 3}
s_max_u32 s{sMax}, s{sMax}, s{sNch + 4}
s_max_u32 s{sMax}, s{sMax}, s{sNch + 5}
s_max_u32 s{sMax}, s{sMax}, s{sNch + 6}
s_waitcnt lgkmcnt(0)
v_cmp_gt_u32 vcc, v{t2}, v{pa + 4}
s_bcnt1_i32_b64 s{sN}, vcc
v_mov_b32 v{t3}, 252
v_mbcnt_lo_u32_b32 v{t0}, vcc_lo, 0
v_mbcnt_hi_u32_b32 v{t0}, vcc_hi, v{t0}
v_lshlrev_b32 v{t0}, 2, v{t0}
v_cndmask_b32 v{t0}, v{t3}, v{t0}, vcc
ds_permute_b32 v{vList}, v{t0}, v{pa + 6}
v_mov_b32 v{t3}, {FLAG}
s_waitcnt lgkmcnt(0)
s_barrier
ds_read_b32 v{t3}, v{t3}
''')
    TB = pa + 8

    def passB1(st_):
        r = REC + 4 * st_
        A(f'''
v_lshlrev_b32_sdwa v{t2}, 2, v{r + 2} dst_sel:DWORD dst_unused:UNUSED_PAD src0_sel:DWORD src1_sel:BYTE_1
ds_read_b32 v{TB + (st_ & 15)}, v{t2} offset:{BASE}
''')

    def passB2(st_):
        r = REC + 4 * st_
        A(f'''
v_add_u32 v{r + 3}, v{r + 3}, v{TB + (st_ & 15)}
v_cmpx_ne_u32 vcc, 0, v{r + 2}
v_lshl_add_u32 v{t2}, v{r + 3}, 2, s{sEnt}
v_lshl_add_u32 v{r + 3}, v{r + 3}, 3, s{sCoef}
ds_write_b32 v{t2}, v{r + 2}
ds_write_b64 v{r + 3}, {vr(r, 2)}
s_mov_b64 exec, -1
''')
    for st_ in range(16):
        passB1(st_)
    A(f'''
s_waitcnt lgkmcnt(14)
v_readfirstlane_b32 s{sFlag}, v{t3}
s_nop 0
s_bitcmp1_b32 s{sFlag}, 0
s_cbranch_scc1 K2_overflow
s_lshr_b32 s{sFlag}, s{sFlag}, 1
s_or_b32 s{sMore}, s{sMore}, s{sFlag}
s_waitcnt lgkmcnt(0)
''')
    for st_ in range(16):
        passB2(st_)
    for st_ in range(16, 32):
        lab = A.label('K2_b1')
        A(f's_bitcmp1_b32 s{sAct}, {st_ - 16}')
        A(f's_cbranch_scc0 {lab}')
        passB1(st_)
        A(f'{lab}:')
    A('s_waitcnt lgkmcnt(0)')
    for st_ in range(16, 32):
        lab = A.label('K2_b2')
        A(f's_bitcmp1_b32 s{sAct}, {st_ - 16}')
        A(f's_cbranch_scc0 {lab}')
        passB2(st_)
        A(f'{lab}:')
    A(f'''
s_waitcnt lgkmcnt(0)
s_barrier
''')
    stamp()
    A(f'''
s_cmp_eq_u32 s{sN}, 0
s_cbranch_scc1 K2_pass_end
''')

    def dma(e):
        for i in range(4):
            A(f'v_mad_u32_u16 v{e + i}, v{e + i}, s{s512}, v{vPiece} op_sel:[1,0,0,0]')
        for i in range(4):
            A(f'buffer_load_dwordx4 v{e + i}, s[{sX}:{sX + 3}], s{sF + i} offen offset:{1024 * i} lds')

    def advance_fill():
        lab = A.label('K2_nowrap')
        A(f'''
s_add_u32 s{sIF}, s{sIF}, 1
s_cmp_lg_u32 s{sIF}, s{sN}
s_cbranch_scc1 {lab}
s_mov_b32 s{sIF}, 0
s_add_u32 s{sFr}, s{sFr}, 1
s_cmp_eq_u32 s{sFr}, 4
s_cselect_b32 s{sT}, 0x40000000, 128
s_add_u32 s{sF}, s{sF}, s{sT}
s_add_u32 s{sF + 1}, s{sF + 1}, s{sT}
s_add_u32 s{sF + 2}, s{sF + 2}, s{sT}
s_add_u32 s{sF + 3}, s{sF + 3}, s{sT}
{lab}:
''')

    def advance_a():
        A(f'''
s_add_u32 s{sIA}, s{sIA}, 1
s_cmp_lg_u32 s{sIA}, s{sN}
s_cselect_b32 s{sIA}, s{sIA}, 0
''')

    def aprep():
        A(f'''
v_cmp_eq_u32_sdwa vcc, v{EA}, v{vQ} src0_sel:BYTE_0 src1_sel:DWORD
v_cmp_eq_u32_sdwa s[{sM2}:{sM2 + 1}], v{EA + 1}, v{vQ} src0_sel:BYTE_0 src1_sel:DWORD
''')

    def asel():
        A(f'''
v_cndmask_b32 v{EA}, v{vZero}, v{vCand}, vcc
v_cndmask_b32 v{EA + 1}, v{vZero}, v{vCand}, s[{sM2}:{sM2 + 1}]
''')

    def baddr():
        for cb in range(4):
            A(f'v_add_u32 v{vBt + cb}, s{sSlot}, v{vBc + cb}')

    def breads():
        for cb in range(4):
            A(f'ds_read_b64_tr_b16 {vr(B + 4 * cb, 2)}, v{vBt + cb}')
            A(f'ds_read_b64_tr_b16 {vr(B + 4 * cb + 2, 2)}, v{vBt + cb} offset:2048')
        A(f'ds_read_b64_tr_b16 {vr(AF, 2)}, v{EA}')
        A(f'ds_read_b64_tr_b16 {vr(AF + 2, 2)}, v{EA + 1} offset:16')

    def ereads():
        A(f'''
v_add_u32 v{vT0}, s{sO1}, v{vLaneA}
v_add_u32 v{vT1}, s{sO2}, v{vLaneD}
v_lshl_add_u32 v{vCand}, s{sO1}, 1, v{vLaneC}
ds_read2_b32 {vr(EA, 2)}, v{vT0} offset0:0 offset1:2
ds_read_b128 {vr(ED, 4)}, v{vT1}
''')

    A(f'''
s_mov_b32 s{sIF}, 0
s_mov_b32 s{sFr}, 0
s_movk_i32 s{sF}, 3072
s_movk_i32 s{sF + 1}, 2048
s_movk_i32 s{sF + 2}, 1024
s_mov_b32 s{sF + 3}, 0
s_mov_b32 s{sIA}, 0
''')
    for c in range(R):
        A(f'v_readlane_b32 s{sO2}, v{vList}, s{sIA}')
        advance_a()
        A(f'v_add_u32 v{vT1}, s{sO2}, v{vLaneD}')
        A(f'ds_read_b128 {vr(PF + 4 * c, 4)}, v{vT1}')
    A(f'''
v_readlane_b32 s{sO1}, v{vList}, 0
s_mov_b32 s{sIA}, 0
s_mov_b32 s{sSlot}, 0
v_add_u32 v{vT0}, s{sO1}, v{vLaneA}
v_lshl_add_u32 v{vCand}, s{sO1}, 1, v{vLaneC}
ds_read2_b32 {vr(EA, 2)}, v{vT0} offset0:0 offset1:2
''')
    for c in range(R):
        A(f's_add_u32 m0, s{sStage}, {c * 4096}')
        A(f's_waitcnt lgkmcnt({R - c})')
        dma(PF + 4 * c)
        advance_fill()
    A('s_waitcnt lgkmcnt(0)')
    aprep()
    advance_a()
    A(f'v_readlane_b32 s{sO1}, v{vList}, s{sIA}')
    A(f'v_readlane_b32 s{sO2}, v{vList}, s{sIF}')
    asel()
    baddr()
    for i in range(112):
        A(f'v_mov_b32 v{ACC + i}, 0')
    A(f's_waitcnt vmcnt({4 * (R - 1)})')
    stamp()
    breads()
    ereads()
    A(f'''
s_mov_b32 s{sRound}, 0
K2_round:
s_mov_b32 s{sStep}, 0
K2_step:
''')
    for g in range(NG):
        lab = A.label('K2_skip')
        A(f'''
s_cmp_gt_u32 s{sNch + g}, s{sStep}
s_cbranch_scc0 {lab}
s_add_u32 m0, s{sStage}, s{sSlot}
s_waitcnt lgkmcnt(2)
v_mfma_f32_16x16x32_bf16 {vr(acc(g, 0), 4)}, {vr(AF, 4)}, {vr(B, 4)}, {vr(acc(g, 0), 4)}
s_add_u32 s{sSlot}, s{sSlot}, 4096
s_waitcnt lgkmcnt(0)
v_mad_u32_u16 v{ED}, v{ED}, s{s512}, v{vPiece} op_sel:[1,0,0,0]
v_mad_u32_u16 v{ED + 1}, v{ED + 1}, s{s512}, v{vPiece} op_sel:[1,0,0,0]
v_mfma_f32_16x16x32_bf16 {vr(acc(g, 1), 4)}, {vr(AF, 4)}, {vr(B + 4, 4)}, {vr(acc(g, 1), 4)}
buffer_load_dwordx4 v{ED}, s[{sX}:{sX + 3}], s{sF} offen lds
v_mad_u32_u16 v{ED + 2}, v{ED + 2}, s{s512}, v{vPiece} op_sel:[1,0,0,0]
buffer_load_dwordx4 v{ED + 1}, s[{sX}:{sX + 3}], s{sF + 1} offen offset:1024 lds
v_mfma_f32_16x16x32_bf16 {vr(acc(g, 2), 4)}, {vr(AF, 4)}, {vr(B + 8, 4)}, {vr(acc(g, 2), 4)}
v_mad_u32_u16 v{ED + 3}, v{ED + 3}, s{s512}, v{vPiece} op_sel:[1,0,0,0]
buffer_load_dwordx4 v{ED + 2}, s[{sX}:{sX + 3}], s{sF + 2} offen offset:2048 lds
''')
        if R & (R - 1) == 0:
            A(f's_and_b32 s{sSlot}, s{sSlot}, {STAGE_W - 1}')
        else:
            A(f's_cmp_eq_u32 s{sSlot}, {STAGE_W}')
            A(f's_cselect_b32 s{sSlot}, 0, s{sSlot}')
        A(f'''
v_mfma_f32_16x16x32_bf16 {vr(acc(g, 3), 4)}, {vr(AF, 4)}, {vr(B + 12, 4)}, {vr(acc(g, 3), 4)}
buffer_load_dwordx4 v{ED + 3}, s[{sX}:{sX + 3}], s{sF + 3} offen offset:3072 lds
''')
        aprep()
        advance_fill()
        advance_a()
        A(f'v_readlane_b32 s{sO2}, v{vList}, s{sIF}')
        A(f'v_readlane_b32 s{sO1}, v{vList}, s{sIA}')
        asel()
        baddr()
        A(f's_waitcnt vmcnt({4 * (R - 1)})')
        breads()
        ereads()
        A(f'{lab}:')
    A(f'''
s_add_u32 s{sStep}, s{sStep}, 1
s_cmp_lt_u32 s{sStep}, s{sMax}
s_cbranch_scc1 K2_step
''')
    stamp_round = stamps

    def flush(j):
        k = j - 1
        for t in range(2):
            groups = range(4) if t == 0 else range(4, NG)
            ncv = 0
            for g in groups:
                gq = g & 3
                if gq:
                    A(f'v_xor_b32 v{vX}, {32 * gq}, v{vPw}')
                    adr = vX
                else:
                    adr = vPw
                for r in range(4):
                    neg = '-' if (j > 0 and r == 1 + (k + 1) % 3) else ''
                    c = CV + 2 * (ncv & 1)
                    ncv += 1
                    A(f'v_cvt_pk_bf16_f32 v{c}, {neg}v{acc(g, 0) + r}, {neg}v{acc(g, 1) + r}')
                    A(f'v_cvt_pk_bf16_f32 v{c + 1}, {neg}v{acc(g, 2) + r}, {neg}v{acc(g, 3) + r}')
                    A(f'ds_write_b64 v{adr}, {vr(c, 2)} offset:{r * 2048 + gq * 512}')
            def pread(r):
                pf = PF + 8 * (r & 1)
                A(f'ds_read_b128 {vr(pf, 4)}, v{vPr} offset:{r * 2048}')
                A(f'ds_read_b128 {vr(pf + 4, 4)}, v{vPr + 1} offset:{r * 2048}')
            pread(0)
            pread(1)
            if j < 3:
                for g in groups:
                    for i in range(16):
                        A(f'v_mov_b32 v{ACC + 16 * g + i}, 0')
            for r in range(4):
                if j == 0:
                    blk, rp = (0, 0) if r == 0 else (2, r)
                else:
                    blk = 1 if r == j else (3 if r == 0 else 4)
                    rp = r ^ j
                pf = PF + 8 * (r & 1)
                A(f's_waitcnt lgkmcnt({2 if r < 3 else 0})')
                for s in range(2):
                    for ob in range(4):
                        A(f'v_mfma_f32_16x16x32_bf16 {Ureg(t, rp, ob)}, {ar(W(blk, s, ob), 4)}, '
                          f'{vr(pf + 4 * s, 4)}, {Ureg(t, rp, ob)}')
                if r < 2:
                    pread(r + 2)

    A(f'''
s_cmp_eq_u32 s{sRound}, 1
s_cbranch_scc1 K2_flush1
s_cmp_eq_u32 s{sRound}, 2
s_cbranch_scc1 K2_flush2
s_cmp_eq_u32 s{sRound}, 3
s_cbranch_scc1 K2_flush3
''')
    for j in range(4):
        if j:
            A(f'K2_flush{j}:')
        A('s_nop 7')
        if stamps and j < 3:
            pass
        flush(j)
        if j < 3:
            A(f's_mov_b32 s{sRound}, {j + 1}')
            A('s_branch K2_round')
    A(f'''
K2_pass_end:
s_add_u32 s{sLo}, s{sLo}, s{sWin}
s_cmp_lt_u32 s{sLo}, 256
s_cbranch_scc1 K2_again
s_cmp_eq_u32 s{sMore}, 0
s_cbranch_scc1 K2_epilogue
s_mov_b32 s{sMore}, 0
s_mov_b32 s{sLo}, 0
s_movk_i32 s{sWin}, 256
s_add_u32 s{sRb}, s{sRb}, 32
s_cmp_ge_u32 s{sRb}, {EPP}
s_cbranch_scc1 K2_epilogue
s_branch K2_again
K2_overflow:
s_lshr_b32 s{sWin}, s{sWin}, 1
s_cmp_lt_u32 s{sWin}, 4
s_cbranch_scc1 K2_epilogue
K2_again:
s_waitcnt vmcnt(0) lgkmcnt(0)
s_barrier
s_branch K2_pass
K2_epilogue:
''')
    stamp()
    A(f'''
v_and_b32 v{t0}, 15, v{L}
v_lshrrev_b32 v{t1}, 2, v{t0}
v_and_b32 v{t2}, 3, v{t0}
v_lshl_add_u32 v{t2}, v{t1}, 4, v{t2}
s_lshl_b32 s{sT}, s{sWave}, 2
s_mul_i32 s{sT2}, s2, {NPB}
s_add_u32 s{sT}, s{sT}, s{sT2}
v_add_u32 v{t2}, s{sT}, v{t2}
v_lshrrev_b32 v{t3}, 4, v{L}
v_lshlrev_b32 v{t3}, 4, v{t3}
v_lshl_add_u32 v{pa + 4}, v{t2}, 9, v{t3}
v_add_u32 v{pa + 5}, 0x8000, v{pa + 4}
s_add_u32 s{sT2}, s{sT2}, 96
s_add_u32 s{sT2}, s{sT2}, s{sWave}
s_lshl_b32 s{sT2}, s{sT2}, 9
s_cmp_lt_u32 s{sWave}, 2
s_cselect_b32 s{sT2}, s{sT2}, 0x80000000
v_add_u32 v{t3}, s{sT2}, v{t3}
v_mov_b32 v{t1}, 0x80000000
v_cmp_eq_u32 vcc, 8, v{t0}
v_cmp_gt_u32 s[{sM2}:{sM2 + 1}], 8, v{t0}
s_nop 1
v_cndmask_b32 v{t1}, v{t1}, v{t3}, vcc
v_cndmask_b32 v{pa + 5}, v{t1}, v{pa + 5}, s[{sM2}:{sM2 + 1}]
''')
    for i in range(64):
        A(f'v_accvgpr_read_b32 v{ACC + i}, a{U1 + i}')
    GT = 96
    OB = 112
    nq = 0
    for t in range(2):
        ub = U0 if t == 0 else ACC
        adr = pa + 4 + t
        for i in range(16):
            A(f'v_mul_f32 v{GT + i}, 0xbfb8aa3b, v{ub + i}')
        for i in range(16):
            A(f'v_exp_f32 v{GT + i}, v{GT + i}')
        for i in range(16):
            A(f'v_add_f32 v{GT + i}, 1.0, v{GT + i}')
        for i in range(16):
            A(f'v_rcp_f32 v{GT + i}, v{GT + i}')
        for r in range(4):
            if r:
                for i in range(16):
                    A(f'v_mul_f32 v{ub + 16 * r + i}, v{ub + 16 * r + i}, v{GT + i}')
            for h in range(2):
                q = OB + 4 * (nq & 3)
                nq += 1
                for d in range(4):
                    A(f'v_cvt_pk_bf16_f32 v{q + d}, v{ub + 16 * r + 8 * h + 2 * d}, v{ub + 16 * r + 8 * h + 2 * d + 1}')
                A(f'buffer_store_dwordx4 {vr(q, 4)}, v{adr}, s[{sOut}:{sOut + 3}], 0 offen offset:{r * 128 + h * 64}{cfg["out_store"]}')
    if stamps:
        stamp()
        A('s_waitcnt vmcnt(0)')
        stamp()
        A('s_waitcnt lgkmcnt(0)')
        n = nst[0]
        A(f'''
s_add_u32 s{sWs}, s{sWs}, 0x1000000
s_addc_u32 s{sWs + 1}, s{sWs + 1}, 0
s_lshl_b32 s{sT}, s2, 2
s_add_u32 s{sT}, s{sT}, s{sWave}
s_lshl_b32 s{sT}, s{sT}, 6
v_mov_b32 v{t0}, s{sT}
''')
        for i in range(n):
            A(f'v_mov_b32 v{t1}, s{sStamp + 2 * i}')
            A(f'global_store_dword v{t0}, v{t1}, s[{sWs}:{sWs + 1}] offset:{4 * i}')
        A(f'v_mov_b32 v{t1}, s{sN}')
        A(f'global_store_dword v{t0}, v{t1}, s[{sWs}:{sWs + 1}] offset:60')
    A('''
K2_end:
s_endpgm
''')


def k2_descriptor(A):
    A(f'''
.amdhsa_kernel {KNAME}
.amdhsa_next_free_vgpr 512
.amdhsa_next_free_sgpr 96
.amdhsa_accum_offset 256
.amdhsa_group_segment_fixed_size 0
.amdhsa_kernarg_size 96
.amdhsa_user_sgpr_count 2
.amdhsa_user_sgpr_kernarg_segment_ptr 1
.amdhsa_system_sgpr_workgroup_id_x 1
.amdhsa_float_denorm_mode_32 3
.end_amdhsa_kernel
''')


def generate(**kw):
    cfg = dict(DEFAULT)
    cfg.update(kw)
    A = Asm()
    A('.amdgcn_target "amdgcn-amd-amdhsa--gfx950"')
    gen_k1(A, cfg)
    gen_k2(A, cfg)
    A('.section .rodata,"a"')
    A('.p2align 6')
    k1_descriptor(A)
    A('.p2align 6')
    k2_descriptor(A)
    body = A.text()
    head = (
        '; Two launches: bin_kernel sorts the edges into 256 destination bins (records + segment table in d_ws),\n'
        '; the second kernel aggregates per destination node with MFMA and applies the channel mixing and the gate.\n'
        '; kernarg: x 0, rhat 8, e_attr 16, src 24, dst 32, w_rad 40, w_si0 48, w_si1 56, cg_eps 64, out 72, debug 80, ws 88\n'
        f'; @launch kernel=bin_kernel grid=(256,1,1) block=(832,1,1) lds={RECB + 2048}\n'
        f'; @launch kernel={KNAME} grid=(256,1,1) block=(256,1,1) lds={cfg["lds2"]}\n'
    )
    return head + body


if __name__ == '__main__':
    out = sys.argv[1] if len(sys.argv) > 1 else 'gather_scatter__tensor_product_equiv_equiformer__graph.s'
    kw = {}
    for a in sys.argv[2:]:
        k, v = a.split('=', 1)
        kw[k] = eval(v)
    txt = generate(**kw)
    probs = check_hazards(txt)
    for p in probs:
        print('HAZARD', p)
    open(out, 'w').write(txt)
    print('wrote', out, len(txt), 'bytes;', len(probs), 'hazards')
```
